```python
import torch

def _softmax(x, axis=-1):
    return torch.softmax(x, dim=axis)
def _gelu(x):
    return torch.nn.functional.gelu(x, approximate="tanh")
def _silu(x):
    return torch.nn.functional.silu(x)
def _sigmoid(x):
    return torch.sigmoid(x)
def _layernorm(x, axis=-1, eps=1e-5):
    m = x.mean(dim=axis, keepdim=True)
    v = x.var(dim=axis, keepdim=True, unbiased=False)
    return (x - m) / torch.sqrt(v + eps)
def _scatter_add(tgt, idx, src, axis=0):
    return tgt.clone().index_add_(axis, idx, src)
def _segment_sum(src, seg, n):
    out = torch.zeros((n,) + src.shape[1:], dtype=src.dtype)
    return out.index_add_(0, seg, src)
def _pad(x, pw):
    flat = tuple(v for pair in reversed(pw) for v in pair)
    return torch.nn.functional.pad(x, flat)

kernel_name = 'parallel_sum__sliding_local_dilated__glu_gated_bilinear__prompt'

def setup_inputs():

    _w = (lambda a: (lambda t: t.to(torch.bfloat16) if t.is_floating_point() else t)(torch.as_tensor(a)))
    def _A_setup():
        B, S, D = 1, 2048, 448
        return {
            "x": _w((lambda *s: torch.randn(*s, dtype=torch.bfloat16) * 0.05)(B, S, D)),
            "wqkv": _w((lambda *s: torch.randn(*s, dtype=torch.bfloat16) * 0.05)(D, 3 * D)),
            "wo": _w((lambda *s: torch.randn(*s, dtype=torch.bfloat16) * 0.05)(D, D)),
        }
    _A_in = _A_setup()

    def _B_setup():
        B, S, D, F = 1, 2048, 448, 1792
        return {
            "x": _w((lambda *s: torch.randn(*s, dtype=torch.bfloat16) * 0.05)(B, S, D)),
            "w_gate": _w((lambda *s: torch.randn(*s, dtype=torch.bfloat16) * 0.8)(D, F) * (D ** -0.5)),
            "w_up": _w((lambda *s: torch.randn(*s, dtype=torch.bfloat16) * 0.8)(D, F) * (D ** -0.5)),
            "w_down": _w((lambda *s: torch.randn(*s, dtype=torch.bfloat16) * 0.8)(F, D) * (F ** -0.5)),
        }
    _B_in = _B_setup()

    return {
        "A_x": _A_in["x"],
        "A_wqkv": _A_in["wqkv"],
        "A_wo": _A_in["wo"],
        "B_x": _B_in["x"],
        "B_w_gate": _B_in["w_gate"],
        "B_w_up": _B_in["w_up"],
        "B_w_down": _B_in["w_down"],
    }

def reference(A_x, A_wqkv, A_wo, B_x, B_w_gate, B_w_up, B_w_down):
    def _A_ref(x, wqkv, wo):
        B, S, D = x.shape
        H = 16; Dh = D // H
        W, dil = 8, 2
        qkv = (lambda x, *d: x.permute(*d))((x @ wqkv).reshape(B, S, 3, H, Dh), 2, 0, 3, 1, 4)
        q, k, v = qkv[0], qkv[1], qkv[2]
        scale = Dh ** -0.5
        pos = torch.arange(S)
        off = torch.arange(W) * dil
        idx = pos[:, None] - off[None, :]
        mask = idx >= 0
        idx_c = torch.where(mask, idx, 0).reshape(-1)
        kg = k[:, :, idx_c, :].reshape(B, H, S, W, Dh)
        vg = v[:, :, idx_c, :].reshape(B, H, S, W, Dh)
        logits = torch.einsum("bhsd,bhswd->bhsw", q, kg) * scale
        logits = torch.where(mask[None, None, :, :], logits, -1e9)
        attn = _softmax(logits, axis=-1)
        o = torch.einsum("bhsw,bhswd->bhsd", attn, vg)
        return (lambda x, *d: x.permute(*d))(o, 0, 2, 1, 3).reshape(B, S, D) @ wo

    def _B_ref(x, w_gate, w_up, w_down):
        g = torch.einsum("bsd,df->bsf", x, w_gate)
        u = torch.einsum("bsd,df->bsf", x, w_up)
        h = g * u
        return torch.einsum("bsf,fd->bsd", h, w_down)

    x = A_x
    xn = _layernorm(x, axis=-1)
    return x + _A_ref(xn, A_wqkv, A_wo) + _B_ref(xn, B_w_gate, B_w_up, B_w_down)
```

```python
KNAME='parallel_sum__sliding_local_dilated__glu_gated_bilinear__prompt_kernel'
WSLOT=20736; NW=4
XSLOT=18432; XB=NW*WSLOT
RPST=XB+2*XSLOT
STM=RPST+10240
STR=STM+576
CSL=STR+576
LDS_MISC_END=CSL+1280
Q_UOFF=10240+32
P_G=12288; P_U=12288+4096+64
EXK=0; EXV=20480; EXQ=40960
RED_P=272; RED_T=8*32*RED_P
LDS_BYTES=163840
WS_OH=0
WS_W2F=0x900000
WS_CSP=0xB00000
WS_STAT=0xB50000
WS_F1=0xB70000
WS_EP=0xB61000
WS_F2=0xB68000
WS_SIZE=0xB80000
```

```python
import re
RV = re.compile(r'\bv\[(\d+):(\d+)\]|\bv(\d+)\b')
RS = re.compile(r'\bs\[(\d+):(\d+)\]|\bs(\d+)\b')
def regs(tok):
    out=set()
    for m in RV.finditer(tok):
        if m.group(3) is not None: out.add(('v',int(m.group(3))))
        else: out.update(('v',i) for i in range(int(m.group(1)),int(m.group(2))+1))
    for m in RS.finditer(tok):
        if m.group(3) is not None: out.add(('s',int(m.group(3))))
        else: out.update(('s',i) for i in range(int(m.group(1)),int(m.group(2))+1))
    if re.search(r'\bvcc\b',tok): out.add(('s','vcc'))
    if re.search(r'\bexec\b',tok): out.add(('s','exec'))
    if re.search(r'\bm0\b',tok): out.add(('s','m0'))
    return out
TRANS=('v_exp_f32','v_log_f32','v_rcp_f32','v_rsq_f32','v_sqrt_f32','v_sin_f32','v_cos_f32','v_rcp_iflag_f32')
class I:
    def __init__(s, text):
        s.text=text; t=text.split(';')[0].strip(); s.t=t
        s.label = t[:-1] if t.endswith(':') else None
        s.op = t.split()[0] if t and not s.label else ''
        rest = t[len(s.op):].strip() if s.op else ''
        ops=[x.strip() for x in re.split(r',(?![^\[]*\])', rest)] if rest else []
        s.ops=ops
        op=s.op
        s.kind='other'; s.w=set(); s.r=set(); s.passes=0
        if not op or op.startswith('.'): s.kind='dir'; return
        if op.startswith('v_mfma'):
            s.kind='mfma'; s.w=regs(ops[0]); s.ra=regs(ops[1])|regs(ops[2]); s.rc=regs(ops[3]); s.r=s.ra|s.rc
            s.passes = 8 if '32x32x16' in op else 4
            s.r.add(('s','exec'))
        elif op.startswith('v_cmp'):
            s.kind='valu'; s.w=regs(ops[0]); s.r=set().union(*[regs(o) for o in ops[1:]])
            if op.startswith('v_cmpx'): s.w.add(('s','exec'))
        elif op.startswith('v_readfirstlane') or op.startswith('v_readlane'):
            s.kind='valu'; s.w=regs(ops[0]); s.r=set().union(*[regs(o) for o in ops[1:]])
        elif op.startswith('v_permlane') and 'swap' in op:
            s.kind='valu'; s.w=regs(ops[0])|regs(ops[1]); s.r=set(s.w)
        elif op.startswith('v_'):
            s.kind='valu'; s.w=regs(ops[0]); s.r=set().union(*[regs(o) for o in ops[1:]]) if len(ops)>1 else set()
            if op.startswith(('v_fmac','v_dot2c','v_mac')): s.r|=s.w
            if op.startswith(('v_add_co','v_sub_co','v_addc_co','v_subb_co')): s.w|=regs(ops[1])
            if op.startswith('v_cndmask') and len(ops)==3: s.r.add(('s','vcc'))
            if 'dpp' in op or 'row_' in t or 'quad_perm' in t: s.dpp=True; s.r|=set()
            if op.startswith('v_mov_b32_dpp') or 'bank_mask' in t: s.r|=s.w
        elif op.startswith(('buffer_','global_')):
            s.kind='vmem'
            allr=set().union(*[regs(o.split(' ')[0]) for o in ops])
            is_store = 'store' in op or ('atomic' in op)
            is_lds = t.endswith(' lds') or ' lds ' in t or 'load_lds' in op
            if is_store or is_lds: s.w=set(); s.r=allr
            else: s.w=regs(ops[0]); s.r=set().union(*[regs(o.split(' ')[0]) for o in ops[1:]])
            if is_lds: s.r.add(('s','m0')); s.lds_dma=True
            s.is_store=is_store
            s.wide = is_store and ('x3' in op or 'x4' in op)
            if s.wide: s.data=regs(ops[0]) if op.startswith('buffer') else regs(ops[1])
        elif op.startswith('ds_'):
            s.kind='ds'
            if op.startswith(('ds_write','ds_add')): s.r=set().union(*[regs(o.split(' ')[0]) for o in ops])
            else: s.w=regs(ops[0]); s.r=set().union(*[regs(o.split(' ')[0]) for o in ops[1:]])
        elif op.startswith('s_'):
            s.kind='salu'
            if op in ('s_nop','s_waitcnt','s_barrier','s_sleep','s_setprio','s_endpgm','s_branch') or op.startswith('s_cbranch'):
                pass
            elif op.startswith('s_cmp') or op.startswith('s_bitcmp'):
                s.r=set().union(*[regs(o) for o in ops])
            else:
                s.w=regs(ops[0]); s.r=set().union(*[regs(o) for o in ops[1:]]) if len(ops)>1 else set()
                if 'saveexec' in op: s.w.add(('s','exec')); s.r.add(('s','exec'))
            if op.startswith('s_cbranch_vcc'): s.r.add(('s','vcc'))
            if op.startswith('s_cbranch_exec'): s.r.add(('s','exec'))
    def ws(s):
        if s.kind=='dir' or s.label: return 0
        if s.op=='s_nop': return int(s.ops[0],0)+1
        return 1
def vs(x): return {r for r in x if r[0]=='v'}
def ss(x): return {r for r in x if r[0]=='s'}
def need(p,c):
    n=0
    pk,ck=p.kind,c.kind
    if pk=='valu':
        wv=vs(p.w); wsg=ss(p.w)
        if ck=='mfma' and wv & vs(c.r): n=max(n,2)
        if ck=='mfma' and ('s','exec') in wsg: n=max(n,4)
        if ck=='vmem' and wsg & ss(c.r): n=max(n,5)
        if ck in('valu',) and wsg & (ss(c.r)-{('s','exec')}): n=max(n,2)
        if ck=='valu' and c.op.startswith(('v_readlane','v_writelane')) and wsg & ss(c.r): n=max(n,4)
        if ck=='valu' and getattr(c,'dpp',False) and wv & vs(c.r): n=max(n,2)
        if ck=='valu' and getattr(c,'dpp',False) and ('s','exec') in wsg: n=max(n,5)
        if ck=='valu' and c.op.startswith(('v_readfirstlane','v_readlane')) and wv & vs(c.r): n=max(n,1)
        if ck=='valu' and c.op.startswith('v_permlane') and wv & vs(c.r): n=max(n,2)
        if p.op.split('_e')[0] in TRANS and ck=='valu' and wv & vs(c.r): n=max(n,1)
        if ('sdwa' in p.op) and ck=='valu' and wv & vs(c.r): n=max(n,1)
        if ck=='salu' and wsg & ss(c.r): n=max(n,1)
        if ck=='salu' and c.op.startswith(('s_cbranch_vcc','s_cbranch_exec')) and wsg & ss(c.r): n=max(n,5)
    if pk=='salu':
        if ('s','m0') in p.w and getattr(c,'lds_dma',False): n=max(n,1)
        if ('s','exec') in p.w and ck=='mfma': n=max(n,0)
    if pk=='mfma':
        P=p.passes; D=vs(p.w)
        big={4:8,8:12}[P]
        if ck=='mfma':
            if D & vs(c.ra): n=max(n,big)
            if D & vs(c.rc):
                if vs(c.rc)==D and c.passes==P: pass
                else: n=max(n,{4:6,8:10}[P])
            if D & vs(c.w) and not (vs(c.w)==D and c.passes==P): n=max(n,{4:6,8:10}[P])
        elif ck in('valu','vmem','ds'):
            if D & (vs(c.r)|vs(c.w)): n=max(n,big)
        if ck=='valu' and vs(p.rc) & vs(c.w): n=max(n,{4:3,8:7}[P])
    if pk=='vmem' and getattr(p,'wide',False):
        if ck in('valu','mfma','ds','vmem') and p.data & vs(c.w): n=max(n,2 if ck=='valu' else 1)
    return n
def process(lines, insert=True, verbose=True):
    ins=[I(l) for l in lines]
    labels={x.label:i for i,x in enumerate(ins) if x.label}
    preds=[[] for _ in ins]
    for i,x in enumerate(ins):
        if i+1<len(ins) and x.op not in('s_branch','s_endpgm','s_setpc_b64'): preds[i+1].append(i)
        if x.op=='s_branch' or x.op.startswith('s_cbranch'):
            tgt=x.ops[0]
            if tgt in labels: preds[labels[tgt]].append(i)
    LIM=14
    add={}
    viol=[]
    for i,c in enumerate(ins):
        if c.kind=='dir' or c.label: continue
        worst=0; who=None
        stack=[(p,0) for p in preds[i]]; seen={}
        while stack:
            j,d=stack.pop()
            if seen.get(j,99)<=d: continue
            seen[j]=d
            p=ins[j]
            if p.kind!='dir' and not p.label:
                n=need(p,c)
                if n>d+add.get(('after',j),0) and n-d>worst: worst=n-d; who=p
            d2=d+p.ws()+add.get(j,0)
            if d2<LIM:
                for q in preds[j]: stack.append((q,d2))
        if worst>0:
            viol.append((i,worst,who.t,c.t))
            add[i]=add.get(i,0)+0
            add[i]=worst
    out=[]
    for i,l in enumerate(lines):
        if i in add and add[i]>0 and insert:
            n=add[i]
            while n>0:
                k=min(n,16); out.append(f'  s_nop {k-1}   ; hz'); n-=k
        out.append(l)
    if verbose:
        for v in viol: print(f'  hazard: +{v[1]} before [{v[3]}] after [{v[2]}]')
    return out, viol
```

```python
import sys, struct, subprocess, re, os
from common import *
import hazard

STAMPS=False; STAMPSET='main'; HOPS=True
def stamp(a,i,which='main'):
    if STAMPS and which==STAMPSET: a(f's_memrealtime s[{88+2*i}:{89+2*i}]')
def fh(f): return hex(struct.unpack('<I',struct.pack('<f',f))[0])
class Asm:
    def __init__(s): s.L=[]
    def __call__(s, txt):
        for l in txt.split('\n'):
            if l.strip(): s.L.append(l.strip() if l.strip().endswith(':') else '  '+l.strip())
    def label(s,n): s.L.append(n+':')
    def hop(s,on): s.L.append('  ;HOPON' if on else '  ;HOPOFF')

sX,sWQKV,sWO,sWG,sWU,sWD,sOUT,sWS = 4,6,8,12,14,16,18,20
SRD_A,SRD_B,SRD_C,SRD_D,SRD_WS = 24,28,32,36,40
sW,sRB,sC,sIDX,sMU,sXCD,sJ,sCL,sAA = 44,45,46,47,48,49,50,51,52
T0,T1,T2,T3,T4,T5,T6,T7 = 53,54,55,56,57,58,59,60
sTT,sCB,sJ2,sTAG,sR0,sN = 64,65,66,67,68,69
SZ_X=2048*896; SZ_WQKV=448*2688; SZ_WO=448*896; SZ_WG=448*3584; SZ_WD=1792*896
WSRD=f's[{SRD_WS}:{SRD_WS+3}]'

def srd(a, dst, ptr, size):
    a(f'''s_mov_b32 s{dst}, s{ptr}
    s_mov_b32 s{dst+1}, s{ptr+1}
    s_mov_b32 s{dst+2}, {size}
    s_mov_b32 s{dst+3}, 0x20000''')

def k2_ids(a):
    a(f'''s_lshr_b32 s{sJ2}, s{sJ}, 1
    s_bitcmp1_b32 s{sJ}, 0
    s_cselect_b32 s{T0}, 0, 16
    s_add_u32 s{sJ2}, s{sJ2}, s{T0}
    s_mul_i32 s{T0}, s{sJ2}, 37
    s_lshr_b32 s{T0}, s{T0}, 8
    s_mul_i32 s{T1}, s{T0}, 7
    s_sub_u32 s{sCB}, s{sJ2}, s{T1}
    s_lshl_b32 s{sTT}, s{sXCD}, 2
    s_add_u32 s{sTT}, s{sTT}, s{T0}''')

vX=10
sG,sQ,sXc,sXb0,sXb1 = 70,71,72,73,74
def dma_ld(a, ldsoff, voff, srdn, sbase, simm, sM=None):
    a(f's_add_u32 m0, s{sM if sM else sAA}, {ldsoff}')
    a(f's_add_u32 s{T3}, s{sbase}, {simm}')
    a(f'buffer_load_dwordx4 v{voff}, s[{srdn}:{srdn+3}], s{T3} offen lds')
def issue_X(a, xs, P, name):
    base=XB+xs*XSLOT
    a(f's_add_u32 s{T5}, s{sXb1}, s{sXc}')
    if P is None:
        a(f's_bitcmp1_b32 s{sC}, 0\ns_cbranch_scc1 {name}')
    if P is None or P:
        a(f's_add_u32 s{T6}, s{sXb0}, s{sXc}')
        dma_ld(a, base, vX, SRD_C, T6, 0)
    if P is None: a.label(name)
    for t in range(1,9):
        dma_ld(a, base+2048*t, vX, SRD_C, T5, (t-1)*16*896)
    a(f'''s_add_u32 s{sXc}, s{sXc}, 128
    s_cmp_eq_u32 s{sXc}, 896
    s_cselect_b32 s{sXc}, 0, s{sXc}''')

def entry(a):
    if STAMPS:
        for i in range(90,102): a(f's_mov_b32 s{i}, 0')
        a('s_memrealtime s[88:89]')
    a(f'''s_load_dwordx16 s[4:19], s[0:1], 0
    s_load_dwordx2 s[20:21], s[0:1], 72
    v_lshrrev_b32 v1, 6, v0
    v_and_b32 v0, 63, v0
    s_cmp_ge_u32 s2, 256
    s_cbranch_scc1 L_end
    v_readfirstlane_b32 s{sW}, v1
    s_and_b32 s{sXCD}, s2, 7
    s_lshr_b32 s{sJ}, s2, 3
    s_and_b32 s{T0}, s{sXCD}, 1
    s_lshl_b32 s{T0}, s{T0}, 3
    s_lshr_b32 s{T1}, s{sJ}, 2
    s_add_u32 s{sRB}, s{T0}, s{T1}
    s_and_b32 s{sCL}, s{sJ}, 3
    s_lshr_b32 s{T0}, s{sXCD}, 1
    s_lshl_b32 s{T0}, s{T0}, 2
    s_add_u32 s{sC}, s{T0}, s{sCL}
    s_lshr_b32 s{sIDX}, s{sC}, 1
    s_lshl_b32 s{T0}, s{sCL}, 1
    s_add_u32 s{T0}, s{T0}, s{sRB}
    s_mul_i32 s{T1}, s{T0}, 37
    s_lshr_b32 s{T1}, s{T1}, 8
    s_mul_i32 s{T1}, s{T1}, 7
    s_sub_u32 s{sMU}, s{T0}, s{T1}
    s_lshl_b32 s{sR0}, s{sRB}, 7
    s_mov_b32 s{sN}, 0
    s_cmp_lt_u32 s{sW}, 4
    s_cbranch_scc1 L_cmp
    s_cmp_ge_u32 s{sW}, 6
    s_cbranch_scc1 L_h67''')
    a(f'''s_sub_u32 s{sAA}, s{sW}, 4
    v_lshrrev_b32 v1, 3, v0
    s_lshl_b32 s{T0}, s{sAA}, 3
    v_add_u32 v1, s{T0}, v1
    v_lshrrev_b32 v2, 1, v1
    v_and_b32 v2, 7, v2
    v_and_b32 v3, 7, v0
    v_xor_b32 v2, v2, v3
    v_lshlrev_b32 v2, 4, v2
    v_mul_u32_u24 v1, 896, v1
    v_add_u32 v{vX}, v1, v2
    s_mul_i32 s{sXb1}, s{sR0}, 896
    s_sub_u32 s{sXb0}, s{sXb1}, {16*896}
    s_cmp_eq_u32 s{sRB}, 0
    s_cselect_b32 s{sXb0}, 0, s{sXb0}
    s_lshl_b32 s{sXc}, s{sMU}, 7
    s_lshl_b32 s{sAA}, s{sAA}, 10
    s_mul_i32 s{sG}, s{sMU}, {64*3584}
    s_mul_i32 s{sQ}, s{sMU}, {64*2688}
    s_waitcnt lgkmcnt(0)''')
    stamp(a,1,'dma')
    srd(a, SRD_C, sX, SZ_X)
    if STAMPS: a('v_mov_b32 v30, 0')
    issue_X(a, 0, None, 'L_x0q')
    stamp(a,2,'dma')
    srd(a, SRD_A, sWG, SZ_WG); srd(a, SRD_B, sWU, SZ_WG)
    srd(a, SRD_WS, sWS, 0xD00000 if STAMPS else WS_SIZE)
    k2_ids(a)
    a(f's_bitcmp1_b32 s{sC}, 0\ns_cbranch_scc1 L_dmaQ')

def dma_wave(a, typ):
    P = typ=='P'
    a.label(f'L_dma{typ}')
    a.hop(True)
    ax = 9 if P else 8
    if P:
        srd(a, SRD_D, sWQKV, SZ_WQKV)
        a(f's_mul_i32 s{T1}, s{sIDX}, 112')
        for t in range(3):
            a(f'''s_lshr_b32 s{T0}, s{sAA}, 4
            s_add_u32 s{T0}, s{T0}, {128*t}
            v_add_u32 v1, s{T0}, v0
            v_mul_u32_u24 v2, 2731, v1
            v_lshrrev_b32 v2, 16, v2
            v_mul_u32_u24 v3, 24, v2
            v_sub_u32 v3, v1, v3
            v_lshrrev_b32 v4, 3, v3
            v_bfe_u32 v5, v3, 2, 1
            v_bfe_u32 v6, v2, 1, 1
            v_xor_b32 v5, v5, v6
            v_and_b32 v3, 3, v3
            v_mul_u32_u24 v2, 2688, v2
            v_mul_u32_u24 v4, 896, v4
            v_mul_u32_u24 v5, 56, v5
            v_lshlrev_b32 v3, 4, v3
            v_add3_u32 v2, v2, v4, v5
            v_add3_u32 v{11+t}, v2, v3, s{T1}''')
        a(f'''s_lshr_b32 s{T0}, s{sAA}, 7
        v_lshrrev_b32 v1, 3, v0
        v_add_u32 v1, s{T0}, v1
        v_bfe_u32 v2, v1, 1, 1
        v_bfe_u32 v3, v0, 1, 2
        v_xor_b32 v2, v2, v3
        v_lshlrev_b32 v2, 5, v2
        v_and_b32 v3, 1, v0
        v_lshlrev_b32 v3, 4, v3
        v_mul_u32_u24 v1, 3584, v1
        v_add3_u32 v1, v1, v2, v3
        s_lshl_b32 s{T1}, s{sIDX}, 7
        v_add_u32 v14, s{T1}, v1''')
    else:
        a(f'''s_mul_i32 s{T1}, s{sIDX}, 320
        s_add_u32 s{T1}, s{T1}, 1024
        s_mul_i32 s{T2}, s{sAA}, {16*3584//1024}
        s_add_u32 s{T1}, s{T1}, s{T2}
        s_mul_i32 s{T4}, s{sAA}, 5''')
        for t in range(5):
            a(f'''v_add_u32 v1, {64*t}, v0
            v_mul_u32_u24 v2, 3277, v1
            v_lshrrev_b32 v2, 16, v2
            v_mul_u32_u24 v3, 20, v2
            v_sub_u32 v3, v1, v3
            v_lshlrev_b32 v3, 4, v3
            v_mul_u32_u24 v2, 3584, v2
            v_add3_u32 v{11+t}, v2, v3, s{T1}''')
    def issue_W(slot):
        base=slot*WSLOT
        if P:
            for h in range(2):
                for t in range(3): dma_ld(a, base+1024*(2*t+6*h), 11+t, SRD_D, sQ, 16*2688*h)
            for t in range(2): dma_ld(a, base+P_G+2048*t, 14, SRD_A, sG, 16*3584*t)
            for t in range(2): dma_ld(a, base+P_U+2048*t, 14, SRD_B, sG, 16*3584*t)
        else:
            for (uo,sr) in ((0,SRD_A),(Q_UOFF,SRD_B)):
                for t in range(5):
                    a(f's_add_u32 m0, s{T4}, {base+uo+1024*t}\ns_nop 0')
                    a(f'buffer_load_dwordx4 v{11+t}, s[{sr}:{sr+3}], s{sG} offen lds')
        a(f'''s_add_u32 s{sG}, s{sG}, {32*3584}
        s_cmp_eq_u32 s{sG}, {448*3584}
        s_cselect_b32 s{sG}, 0, s{sG}''')
        if P: a(f'''s_add_u32 s{sQ}, s{sQ}, {32*2688}
        s_cmp_eq_u32 s{sQ}, {448*2688}
        s_cselect_b32 s{sQ}, 0, s{sQ}''')
    stamp(a,3,'dma')
    a(f's_mov_b32 s{sN}, -3')
    def head(st):
        if st==2: a(f's_cmp_lt_i32 s{sN}, 0\ns_cbranch_scc1 L_dnb{typ}')
        if st%2==0:
            if st==0:
                a(f'''s_cmp_eq_u32 s{sN}, 12
                s_cbranch_scc0 L_dw{typ}
                s_waitcnt vmcnt(0)
                L_dw{typ}:''')
            a(f's_waitcnt vmcnt({ax+10})')
        else:
            if st==3 and STAMPS and STAMPSET=='dma':
                a(f's_cmp_eq_i32 s{sN}, -1\ns_cbranch_scc0 L_stq{typ}\ns_memrealtime s[96:97]\nL_stq{typ}:')
            a('s_waitcnt vmcnt(10)')
        a('s_barrier')
        if STAMPS:
            a(f'''s_memrealtime s[86:87]
            s_waitcnt lgkmcnt(0)
            s_mov_b32 m0, s{sN}
            s_nop 0
            v_writelane_b32 v30, s86, m0
            s_memtime s[86:87]
            s_waitcnt lgkmcnt(0)
            s_add_u32 m0, s{sN}, 16
            s_nop 0
            v_writelane_b32 v30, s86, m0''')
        if st==2: a.label(f'L_dnb{typ}')
        if st%2==1:
            a(f's_cmp_gt_i32 s{sN}, 9\ns_cbranch_scc1 L_dx{typ}{st}')
            issue_X(a, ((st+3)//2)&1, P, None)
            a.label(f'L_dx{typ}{st}')
    def wpart(st):
        a(f's_cmp_gt_i32 s{sN}, 10\ns_cbranch_scc1 L_dy{typ}{st}')
        issue_W((st+3)%4)
        a.label(f'L_dy{typ}{st}')
        a(f's_add_u32 s{sN}, s{sN}, 1')
        if st==1: a(f's_cmp_eq_u32 s{sN}, 14\ns_cbranch_scc1 L_dend{typ}')
    a.label(f'L_dl{typ}')
    wpart(1)
    for st in (2,3,0):
        head(st); wpart(st)
    head(1)
    a(f's_branch L_dl{typ}')
    a.label(f'L_dend{typ}')
    a.hop(False)
    if STAMPS:
        a(f'''s_lshl_b32 s{T0}, s2, 1
        s_add_u32 s{T0}, s{T0}, s{sW}
        s_sub_u32 s{T0}, s{T0}, 4
        s_lshl_b32 s{T0}, s{T0}, 8
        s_add_u32 s{T0}, s{T0}, 0xC40000
        v_lshlrev_b32 v1, 2, v0
        buffer_store_dword v30, v1, {WSRD}, s{T0} offen''')
    a(f's_branch L_tail_help')

ACC=40; FR=200
def acc(j,tt): return ACC+16*(2*j+tt)
def wfr(s,j): return FR+28*s+4*j
def xfr(s,tt): return FR+28*s+20+4*tt
HACC=16; HX=24; HW=28
sTM,sHN=70,71
def cmp_entry(a):
    a.label('L_cmp')
    if HOPS:
        a(f'''s_lshl_b32 s{T0}, s{sCL}, 2
        s_add_u32 s{T0}, s{T0}, s{sW}
        s_mov_b64 s[62:63], exec
        s_mov_b64 exec, 0''')
        for k in range(16):
            a(f's_cmp_eq_u32 s{T0}, {k}\ns_cbranch_scc1 HOPSTART{k}')
        a.label('L_hopret')
        a('s_mov_b64 exec, s[62:63]')
    a(f'''s_and_b32 s{sTM}, s{sW}, 1
    s_lshr_b32 s{sHN}, s{sW}, 1
    v_lshrrev_b32 v1, 4, v0
    v_lshrrev_b32 v2, 5, v0
    v_and_b32 v3, 1, v1
    v_bfe_u32 v4, v0, 2, 2
    v_and_b32 v5, 3, v0
    v_lshlrev_b32 v5, 3, v5
    v_lshlrev_b32 v6, 3, v2
    v_add_u32 v6, v6, v4
    s_lshl_b32 s{T0}, s{sTM}, 6
    s_add_u32 s{T0}, s{T0}, 16
    v_and_b32 v7, 31, v0
    v_add_u32 v7, s{T0}, v7
    v_bfe_u32 v12, v7, 1, 3
    v_lshlrev_b32 v7, 7, v7
    v_add_u32 v7, {XB}, v7''')
    for s in range(4):
        a(f'''v_add_u32 v13, {2*s}, v2
        v_xor_b32 v13, v13, v12
        v_lshlrev_b32 v13, 4, v13
        v_add_u32 v{8+s}, v7, v13''')
    for r in range(ACC,ACC+160,2): a(f'v_mov_b64 v[{r}:{r+1}], 0')
    a('s_waitcnt lgkmcnt(0)')
    srd(a, SRD_WS, sWS, 0xD00000 if STAMPS else WS_SIZE)
    k2_ids(a)
    a(f's_bitcmp1_b32 s{sC}, 0\ns_cbranch_scc1 L_cmpQ')

def cmp_wave(a, typ):
    P = typ=='P'
    a.label(f'L_cmp{typ}')
    if P:
        a(f'''v_lshrrev_b32 v7, 1, v4
        v_xor_b32 v12, s{sHN}, v7
        v_lshlrev_b32 v12, 6, v12
        v_mul_u32_u24 v13, 384, v6
        v_add_u32 v12, v12, v13
        v_lshlrev_b32 v13, 5, v3
        v_add3_u32 v12, v12, v13, v5
        v_add_u32 v13, {2*WSLOT}, v12
        v_mul_u32_u24 v14, {P_U-P_G}, v3
        v_lshlrev_b32 v15, 7, v6
        v_add3_u32 v14, v14, v15, v5
        s_lshl_b32 s{T0}, s{sHN}, 6
        s_add_u32 s{T0}, s{T0}, {P_G}
        v_add_u32 v14, s{T0}, v14
        v_lshlrev_b32 v15, 5, v7
        v_sub_u32 v36, v14, v15
        v_add_u32 v36, 32, v36
        v_add_u32 v14, v14, v15
        v_add_u32 v15, {2*WSLOT}, v14
        v_add_u32 v37, {2*WSLOT}, v36
        v_and_b32 v16, 15, v0
        v_bfe_u32 v17, v16, 1, 3
        v_lshlrev_b32 v16, 7, v16
        v_add_u32 v16, {XB}, v16
        v_xor_b32 v18, v1, v17
        v_lshlrev_b32 v18, 4, v18
        v_add_u32 v38, v16, v18
        v_add_u32 v18, 4, v1
        v_xor_b32 v18, v18, v17
        v_lshlrev_b32 v18, 4, v18
        v_add_u32 v39, v16, v18
        v_lshlrev_b32 v16, 3, v1
        v_add_u32 v16, v16, v4
        v_mul_u32_u24 v16, 384, v16
        v_xor_b32 v17, s{sHN}, v7
        v_lshlrev_b32 v17, 6, v17
        v_add3_u32 v16, v16, v17, v5
        s_lshl_b32 s{T0}, s{sTM}, 7
        s_add_u32 s{T0}, s{T0}, 128
        v_add_u32 v6, s{T0}, v16
        v_add_u32 v7, {2*WSLOT}, v6''')
        for r in range(HACC,HACC+8): a(f'v_mov_b32 v{r}, 0')
    else:
        a(f'''v_mul_u32_u24 v12, 320, v6
        v_mul_u32_u24 v13, {Q_UOFF}, v3
        v_add3_u32 v12, v12, v13, v5
        s_mul_i32 s{T0}, s{sHN}, 160
        v_add_u32 v12, s{T0}, v12
        v_add_u32 v13, {2*WSLOT}, v12''')
    def reads(set_, st, s):
        o=[]; so=(st&1)*WSLOT; hi=st>=2; xs=(st>>1)&1
        for tt in range(2):
            o.append(f'ds_read_b128 v[{xfr(set_,tt)}:{xfr(set_,tt)+3}], v{8+2*(st&1)+s} offset:{xs*XSLOT+tt*4096}')
        for j in range(5):
            for q in range(2):
                d=wfr(set_,j)+2*q
                if not P: b=13 if hi else 12; off=so+(16*s+4*q)*320+32*j
                elif j<3: b=13 if hi else 12; off=so+(16*s+4*q)*384+128*j
                elif j==3: b=15 if hi else 14; off=so+(16*s+4*q)*128
                else: b=37 if hi else 36; off=so+(16*s+4*q)*128
                o.append(f'ds_read_b64_tr_b16 v[{d}:{d+1}], v{b} offset:{off}')
        return o
    def halo_reads(st):
        so=(st&1)*WSLOT; hi=st>=2; xs=(st>>1)&1
        o=[f'ds_read_b128 v[{HX}:{HX+3}], v{38+(st&1)} offset:{xs*XSLOT}']
        for dt in range(2):
            for q in range(2):
                d=HW+4*dt+2*q
                o.append(f'ds_read_b64_tr_b16 v[{d}:{d+1}], v{7 if hi else 6} offset:{so+4*q*384+32*dt}')
        return o
    def mfmas(set_, items, extra=()):
        m=len(items); pos=0; k=0; ex=list(extra)
        for j in range(5):
            for tt in range(2):
                d=acc(j,tt)
                A_=f'v[{wfr(set_,j)}:{wfr(set_,j)+3}]'; B_=f'v[{xfr(set_,tt)}:{xfr(set_,tt)+3}]'
                if P and j==2: A_,B_=B_,A_
                a(f'v_mfma_f32_32x32x16_bf16 v[{d}:{d+15}], {A_}, {B_}, v[{d}:{d+15}]')
                k+=1
                end=min(m,(m*k+6)//7)
                while pos<end: a(items[pos]); pos+=1
                if k>=8 and ex: a(ex.pop(0))
    a('s_barrier')
    stamp(a,1)
    for x in reads(0,0,0): a(x)
    a.label(f'L_cl{typ}')
    a.hop(True)
    for st in range(4):
        a('s_waitcnt lgkmcnt(0)')
        mfmas(0, reads(1,st,1)+(halo_reads(st) if P else []))
        a('s_waitcnt lgkmcnt(0)')
        a('s_barrier')
        ex=[]
        if P: ex=[f'v_mfma_f32_16x16x32_bf16 v[{HACC+4*dt}:{HACC+4*dt+3}], v[{HW+4*dt}:{HW+4*dt+3}], v[{HX}:{HX+3}], v[{HACC+4*dt}:{HACC+4*dt+3}]' for dt in range(2)]
        mfmas(1, reads(0,(st+1)%4,0), ex)
        a(f's_add_u32 s{sN}, s{sN}, 1')
        if st==1: a(f's_cmp_eq_u32 s{sN}, 14\ns_cbranch_scc1 L_cend{typ}')
    a(f's_branch L_cl{typ}')
    a.label(f'L_cend{typ}')
    a('s_waitcnt lgkmcnt(0)')
    a('s_barrier')
    stamp(a,2)

def cs_addr(a, typ):
    P = typ=='P'
    a('''v_lshrrev_b32 v1, 4, v0
    v_bfe_u32 v4, v0, 2, 2
    v_and_b32 v5, 3, v0
    v_lshlrev_b32 v5, 3, v5
    v_lshlrev_b32 v6, 3, v1
    v_add_u32 v6, v6, v4''')
    if P:
        a(f'''v_lshrrev_b32 v7, 1, v4
        v_mul_u32_u24 v8, 384, v6
        v_add_u32 v8, v8, v5
        v_lshlrev_b32 v9, 6, v7
        v_add_u32 v10, v8, v9
        v_sub_u32 v11, v8, v9
        v_add_u32 v11, 64, v11
        v_lshlrev_b32 v8, 7, v6
        v_add_u32 v8, v8, v5
        v_lshlrev_b32 v9, 5, v7
        v_add_u32 v12, v8, v9
        v_sub_u32 v13, v8, v9
        v_add_u32 v13, 32, v13''')
    else:
        a('''v_mul_u32_u24 v10, 320, v6
        v_add_u32 v10, v10, v5''')
def cs_reads(a, typ, st):
    P = typ=='P'; so=st*WSLOT
    for u in range(20):
        tile=u>>1; half=u&1
        for q in range(2):
            d=64+4*u+2*q
            if not P: b=10; off=so+4*q*320+32*tile+half*Q_UOFF
            else:
                hn=tile//5; j=tile%5
                if j<3: b=10+hn; off=so+4*q*384+128*j+32*half
                else:
                    f=2*hn+(j-3); b=12+(f&1); off=so+4*q*128+(P_U if half else P_G)+64*(f>>1)
            a(f'ds_read_b64_tr_b16 v[{d}:{d+1}], v{b} offset:{off}')
    a('s_waitcnt lgkmcnt(0)')
def cs_mfma(a, first):
    for u in range(20):
        c = '0' if first else f'v[{144+4*u}:{147+4*u}]'
        a(f'v_mfma_f32_16x16x32_bf16 v[{144+4*u}:{147+4*u}], v[16:19], v[{64+4*u}:{67+4*u}], {c}')

def flag_store(a, base, word):
    a(f'''s_lshl_b32 s{T0}, s{sRB}, 4
    s_add_u32 s{T0}, s{T0}, s{sC}
    s_lshl_b32 s{T0}, s{T0}, 7
    s_add_u32 s{T0}, s{T0}, {base+4*word}
    v_mov_b32 v1, s{T0}
    v_mov_b32 v2, s{sTAG}
    v_cmp_eq_u32 vcc, 0, v0
    s_and_saveexec_b64 s[74:75], vcc
    buffer_store_dword v2, v1, {WSRD}, 0 offen sc1
    s_mov_b64 exec, s[74:75]''')

def helper6(a):
    a.label('L_h6')
    a.hop(True)
    a(f'''v_mov_b32 v1, {WS_EP}
    buffer_load_dword v2, v1, {WSRD}, 0 offen sc1
    v_mov_b32 v16, 0x3f803f80
    v_mov_b32 v17, 0x3f803f80
    v_mov_b32 v18, 0x3f803f80
    v_mov_b32 v19, 0x3f803f80
    s_cmp_lt_u32 s{sRB}, 7
    s_cbranch_scc0 L_h6np
    s_bitcmp1_b32 s{sC}, 0
    s_cbranch_scc1 L_h6Q''')
    for typ in 'PQ':
        if typ=='Q': a.label('L_h6Q')
        cs_addr(a, typ)
        a('s_barrier')
        stamp(a,1)
        cs_reads(a, typ, 0)
        a('s_barrier')
        cs_mfma(a, True)
        cs_reads(a, typ, 1)
        if typ=='P': a('s_branch L_h6j')
    a.label('L_h6j')
    a('s_barrier')
    cs_mfma(a, False)
    a(f'''s_mov_b32 s74, 0xffff0000
    s_mov_b32 s75, 0
    s_mov_b32 s76, 0
    s_mov_b32 s77, 0xffff
    s_mov_b32 s78, 0
    s_mov_b32 s79, 0xffff0000
    s_mul_i32 s{T2}, s{sC}, 7
    s_add_u32 s{T2}, s{T2}, s{sMU}
    s_mul_i32 s{T2}, s{T2}, 1280
    s_add_u32 s{T2}, s{T2}, {WS_CSP}
    v_lshlrev_b32 v20, 2, v0''')
    for k in range(5):
        d=[144+4*(4*k+g) for g in range(4)]
        a(f'''v_cndmask_b32 v21, v{d[0]}, v{d[1]}, s[74:75]
        v_cndmask_b32 v21, v21, v{d[2]}, s[76:77]
        v_cndmask_b32 v{24+k}, v21, v{d[3]}, s[78:79]''')
    a('s_waitcnt vmcnt(0)\ns_barrier')
    for k in range(5):
        a(f'buffer_store_dword v{24+k}, v20, {WSRD}, s{T2} offen offset:{256*k} sc1')
    a('s_branch L_h6k')
    a.label('L_h6np')
    a('s_barrier\ns_barrier\ns_barrier\ns_waitcnt vmcnt(0)\ns_barrier')
    a.label('L_h6k')
    a(f'''v_readfirstlane_b32 s{sTAG}, v2
    s_nop 0
    s_add_u32 s{sTAG}, s{sTAG}, 1
    s_barrier''')
    a(f'''s_lshl_b32 s{T0}, s{sRB}, 4
    s_add_u32 s{T1}, s{T0}, s{sC}
    v_mov_b32 v3, s{T1}
    v_add_u32 v4, s{T0}, v0
    v_cmp_gt_u32 vcc, 16, v0
    s_sub_u32 s{T2}, s{T0}, 16
    s_max_i32 s{T2}, s{T2}, 0
    v_cndmask_b32 v3, v3, v4, vcc
    v_add_u32 v4, -2, v0
    v_add_u32 v4, s{T2}, v4
    v_and_b32 v5, 62, v0
    v_cmp_eq_u32 vcc, 16, v5
    v_add_u32 v5, -18, v0
    v_lshlrev_b32 v6, 4, v5
    v_cndmask_b32 v3, v3, v4, vcc
    v_add_u32 v6, s{sC}, v6
    v_cmp_gt_u32 vcc, 7, v5
    v_and_b32 v7, 7, v0
    v_bfe_u32 v8, v0, 3, 2
    v_cndmask_b32 v3, v3, v6, vcc
    v_mul_u32_u24 v8, 7, v8
    v_add_u32 v8, s{sCB}, v8
    v_lshlrev_b32 v9, 1, v8
    v_add_u32 v10, 1, v9
    v_add_u32 v9, -32, v9
    v_cmp_gt_u32 vcc, 16, v8
    v_and_b32 v11, 1, v7
    v_lshlrev_b32 v11, 3, v11
    v_cndmask_b32 v9, v9, v10, vcc
    v_lshrrev_b32 v10, 2, v9
    v_add_u32 v11, v11, v10
    v_lshlrev_b32 v11, 4, v11
    v_lshrrev_b32 v7, 1, v7
    v_lshlrev_b32 v7, 2, v7
    v_and_b32 v9, 3, v9
    v_add3_u32 v11, v11, v7, v9
    v_lshlrev_b32 v3, 7, v3
    v_lshlrev_b32 v11, 7, v11
    v_add_u32 v22, {WS_F1}, v3
    v_add_u32 v23, {WS_F1+4}, v11
    v_mov_b32 v1, {LDS_MISC_END}
    v_mov_b32 v2, s{sTAG}
    ds_write_b32 v1, v2
    s_barrier
    s_waitcnt vmcnt(0) lgkmcnt(0)
    s_barrier''')
    flag_store(a, WS_F1, 0)
    a('s_barrier')
    a('s_barrier')
    flag_store(a, WS_F1, 1)
    def poll(vaddr, lo, name):
        a(f's_mov_b32 s{T0}, 0')
        a.label(name)
        a(f'''s_waitcnt vmcnt(0)
        v_cmp_eq_u32 vcc, s{sTAG}, v4
        s_add_u32 s{T0}, s{T0}, 1
        s_cmp_eq_u32 {'vcc_lo' if lo==0 else 'vcc_hi'}, -1
        s_cbranch_scc1 {name}d
        s_sleep 4
        buffer_load_dword v4, v{vaddr}, {WSRD}, 0 offen sc1
        s_cmp_lt_u32 s{T0}, 0x8000
        s_cbranch_scc1 {name}
        {name}d:''')
    a(f'buffer_load_dword v4, v22, {WSRD}, 0 offen sc1\ns_barrier\ns_barrier')
    poll(22, 0, 'L_pa')
    a(f's_sub_u32 s{T0}, s{sR0}, 16')
    for i in range(3):
        a(f'''v_add_u32 v1, {64*i}, v0
        v_add_u32 v1, s{T0}, v1
        v_max_i32 v1, 0, v1
        v_min_i32 v1, 2047, v1
        v_lshlrev_b32 v1, 3, v1
        v_add_u32 v{8+i}, {WS_STAT}, v1''')
        a(f'buffer_load_dwordx2 v[{12+2*i}:{13+2*i}], v{8+i}, {WSRD}, 0 offen sc1')
    a(f'''s_barrier
    s_barrier
    buffer_load_dword v4, v23, {WSRD}, 0 offen sc1
    s_barrier
    s_waitcnt vmcnt(1)
    v_lshlrev_b32 v1, 2, v0
    v_add_u32 v1, {STM}, v1
    ds_write_b32 v1, v12
    ds_write_b32 v1, v13 offset:{STR-STM}
    ds_write_b32 v1, v14 offset:256
    ds_write_b32 v1, v15 offset:{STR-STM+256}
    v_cmp_gt_u32 vcc, 16, v0
    s_and_saveexec_b64 s[74:75], vcc
    ds_write_b32 v1, v16 offset:512
    ds_write_b32 v1, v17 offset:{STR-STM+512}
    s_mov_b64 exec, s[74:75]
    s_barrier''')
    poll(23, 32, 'L_pb')
    a('s_waitcnt lgkmcnt(0)')
    a.hop(False)
    a('s_branch L_tail_help')

def helper7(a):
    a.label('L_h7')
    a.hop(True)
    srd(a, SRD_C, sX, SZ_X)
    a(f'''s_lshl_b32 s{T0}, s{sC}, 3
    s_add_u32 s{T0}, s{T0}, s{sR0}
    v_lshrrev_b32 v3, 3, v0
    v_add_u32 v3, s{T0}, v3
    v_and_b32 v8, 7, v0
    v_lshlrev_b32 v8, 4, v8
    v_mul_u32_u24 v9, 896, v3
    v_add_u32 v8, v8, v9''')
    for i in range(7):
        a(f'buffer_load_dwordx4 v[{224+4*i}:{227+4*i}], v8, s[{SRD_C}:{SRD_C+3}], 0 offen offset:{128*i}')
    srd(a, SRD_A, sWO, SZ_WO); srd(a, SRD_B, sWD, SZ_WD)
    a(f'''v_lshlrev_b32 v252, 3, v3
    v_add_u32 v252, {WS_STAT}, v252
    v_mov_b32 v10, 0
    v_mov_b32 v11, 0
    v_mov_b32 v12, 0
    v_mov_b32 v13, 0
    s_barrier
    s_waitcnt vmcnt(0)''')
    stamp(a,1)
    def acc_dw(r):
        a(f'''v_lshlrev_b32 v14, 16, v{r}
        v_and_b32 v15, 0xffff0000, v{r}
        v_pk_add_f32 v[10:11], v[10:11], v[14:15]
        v_pk_fma_f32 v[12:13], v[14:15], v[14:15], v[12:13]''')
    for r in range(224,252): acc_dw(r)
    a('''v_add_f32 v10, v10, v11
    v_add_f32 v12, v12, v13
    s_nop 1
    v_add_f32_dpp v10, v10, v10 quad_perm:[1,0,3,2] row_mask:0xf bank_mask:0xf
    v_add_f32_dpp v12, v12, v12 quad_perm:[1,0,3,2] row_mask:0xf bank_mask:0xf
    s_nop 1
    v_add_f32_dpp v10, v10, v10 quad_perm:[2,3,0,1] row_mask:0xf bank_mask:0xf
    v_add_f32_dpp v12, v12, v12 quad_perm:[2,3,0,1] row_mask:0xf bank_mask:0xf
    s_nop 1
    v_add_f32_dpp v10, v10, v10 row_half_mirror row_mask:0xf bank_mask:0xf
    v_add_f32_dpp v12, v12, v12 row_half_mirror row_mask:0xf bank_mask:0xf''')
    inv=1.0/448.0
    a(f'''s_barrier
    v_mul_f32 v10, {fh(inv)}, v10
    v_mul_f32 v12, {fh(inv)}, v12
    v_fma_f32 v12, -v10, v10, v12
    v_max_f32 v12, 0, v12
    v_cvt_pk_bf16_f32 v14, v10, v12
    v_lshlrev_b32 v16, 16, v14
    v_and_b32 v15, 0xffff0000, v14
    v_add_f32 v15, {fh(1e-5)}, v15
    v_cvt_pk_bf16_f32 v15, v15, v15
    v_and_b32 v15, 0xffff0000, v15
    v_sqrt_f32 v15, v15
    s_nop 0
    v_cvt_pk_bf16_f32 v15, v15, v15
    v_and_b32 v15, 0xffff0000, v15
    v_rcp_f32 v17, v15
    v_and_b32 v18, 7, v0
    v_cmp_eq_u32 vcc, 0, v18
    s_and_saveexec_b64 s[74:75], vcc
    buffer_store_dwordx2 v[16:17], v252, {WSRD}, 0 offen sc1
    s_mov_b64 exec, s[74:75]''')
    a(f'''s_cmp_lt_u32 s{sJ2}, 28
    s_cbranch_scc0 L_h7a
    v_lshrrev_b32 v1, 3, v0
    v_bfe_u32 v2, v1, 1, 1
    v_lshlrev_b32 v2, 2, v2
    v_and_b32 v3, 7, v0
    v_xor_b32 v2, v2, v3
    v_lshlrev_b32 v2, 4, v2
    v_mul_u32_u24 v1, 896, v1
    s_lshl_b32 s{T0}, s{sCB}, 7
    v_add3_u32 v8, v1, v2, s{T0}
    s_lshr_b32 s{T0}, s{sTT}, 1
    s_mul_i32 s{T0}, s{T0}, 28
    s_and_b32 s{T1}, s{sTT}, 1
    s_lshl_b32 s{T1}, s{T1}, 4
    s_add_u32 s{T0}, s{T0}, s{T1}
    s_mul_i32 s{T0}, s{T0}, 896
    s_mov_b32 m0, {RPST}
    s_add_u32 s{T1}, s{T0}, {8*896}
    buffer_load_dwordx4 v8, s[{SRD_A}:{SRD_A+3}], s{T0} offen lds
    s_mov_b32 m0, {RPST+1024}
    s_mul_i32 s{T0}, s{sTT}, {16*896}
    buffer_load_dwordx4 v8, s[{SRD_A}:{SRD_A+3}], s{T1} offen lds''')
    def w2dma(i):
        a(f'''s_mov_b32 m0, {RPST+2048*i}
        s_add_u32 s{T1}, s{T0}, {(32*(i-1))*16*896}
        buffer_load_dwordx4 v8, s[{SRD_B}:{SRD_B+3}], s{T1} offen lds
        s_mov_b32 m0, {RPST+2048*i+1024}
        s_add_u32 s{T1}, s{T1}, {8*896}
        buffer_load_dwordx4 v8, s[{SRD_B}:{SRD_B+3}], s{T1} offen lds''')
    w2dma(1)
    a('s_barrier')
    w2dma(2); w2dma(3); w2dma(4)
    a('s_barrier\ns_barrier')
    a(f'''s_waitcnt vmcnt(0)
    s_barrier
    v_lshrrev_b32 v1, 4, v0
    v_lshrrev_b32 v2, 5, v0
    v_and_b32 v3, 1, v1
    v_bfe_u32 v4, v0, 2, 2
    v_and_b32 v5, 3, v0
    v_lshlrev_b32 v5, 3, v5
    v_lshlrev_b32 v6, 2, v2
    v_add_u32 v6, v6, v4
    v_lshlrev_b32 v6, 7, v6
    v_lshlrev_b32 v3, 5, v3
    v_add3_u32 v6, v6, v3, v5
    v_bfe_u32 v7, v4, 1, 1
    v_lshlrev_b32 v7, 6, v7
    v_add_u32 v10, v6, v7
    v_sub_u32 v11, v6, v7
    v_add_u32 v11, 64, v11
    v_add_u32 v10, {RPST}, v10
    v_add_u32 v11, {RPST}, v11''')
    for i in range(5):
        for nb in range(2):
            for q in range(2):
                d=64+8*i+4*nb+2*q
                a(f'ds_read_b64_tr_b16 v[{d}:{d+1}], v{10+nb} offset:{2048*i+1024*q}')
    a(f'''s_mul_i32 s{T0}, s{sCB}, 144
    s_add_u32 s{T0}, s{T0}, s{sTT}
    s_lshl_b32 s{T0}, s{T0}, 11
    s_add_u32 s{T0}, s{T0}, {WS_W2F}
    v_lshlrev_b32 v12, 4, v0
    s_waitcnt lgkmcnt(0)''')
    for i in range(5):
        if i==4: a(f's_cmp_lt_u32 s{sTT}, 16\ns_cbranch_scc0 L_h7d')
        a(f's_add_u32 s{T1}, s{T0}, {i*32*2048}')
        for nb in range(2):
            d=64+8*i+4*nb
            a(f'buffer_store_dwordx4 v[{d}:{d+3}], v12, {WSRD}, s{T1} offen offset:{1024*nb} sc1')
    a('s_branch L_h7d')
    a.label('L_h7a')
    a('s_barrier\ns_barrier\ns_barrier\ns_waitcnt vmcnt(0)\ns_barrier')
    a.label('L_h7d')
    a(f'''v_min_u32 v1, 6, v0
    v_lshlrev_b32 v1, 4, v1
    v_add_u32 v1, s{sC}, v1
    v_lshlrev_b32 v1, 7, v1
    v_add_u32 v22, {WS_F1}, v1
    s_barrier
    s_barrier
    s_waitcnt vmcnt(0)
    s_barrier
    v_mov_b32 v1, {LDS_MISC_END}
    ds_read_b32 v1, v1
    buffer_load_dword v4, v22, {WSRD}, 0 offen sc1
    s_barrier
    s_waitcnt lgkmcnt(0)
    v_readfirstlane_b32 s{sTAG}, v1
    s_barrier''')
    a(f's_mov_b32 s{T0}, 0')
    a.label('L_pc')
    a(f'''s_waitcnt vmcnt(0)
    v_cmp_eq_u32 vcc, s{sTAG}, v4
    s_add_u32 s{T0}, s{T0}, 1
    s_cmp_eq_u64 vcc, exec
    s_cbranch_scc1 L_pcd
    s_sleep 4
    buffer_load_dword v4, v22, {WSRD}, 0 offen sc1
    s_cmp_lt_u32 s{T0}, 0x8000
    s_cbranch_scc1 L_pc
    L_pcd:
    s_mul_i32 s{T2}, s{sC}, {7*1280}
    s_add_u32 s{T2}, s{T2}, {WS_CSP}
    v_lshlrev_b32 v20, 4, v0
    v_lshrrev_b32 v1, 4, v0
    v_mul_u32_u24 v1, 1280, v1
    v_and_b32 v2, 15, v0
    v_lshlrev_b32 v2, 4, v2
    v_add3_u32 v21, v1, v2, 0
    v_add_u32 v21, 1024, v21''')
    for p in range(4):
        a(f's_add_u32 s{T3}, s{T2}, {1280*p}')
        a(f'buffer_load_dwordx4 v[{64+4*p}:{67+4*p}], v20, {WSRD}, s{T3} offen sc1')
    a('s_barrier')
    for p in range(4,7):
        a(f's_add_u32 s{T3}, s{T2}, {1280*p}')
        a(f'buffer_load_dwordx4 v[{64+4*p}:{67+4*p}], v20, {WSRD}, s{T3} offen sc1')
    a(f'''buffer_load_dwordx4 v[92:95], v21, {WSRD}, s{T2} offen sc1
    s_add_u32 s{T3}, s{T2}, {4*1280}
    buffer_load_dwordx4 v[96:99], v21, {WSRD}, s{T3} offen sc1
    s_barrier
    s_barrier
    s_waitcnt vmcnt(0)
    v_cmp_gt_u32 vcc, 48, v0''')
    for k in range(4): a(f'v_cndmask_b32 v{96+k}, 0, v{96+k}, vcc')
    for p in range(1,7):
        for k in range(0,4,2): a(f'v_pk_add_f32 v[{64+k}:{65+k}], v[{64+k}:{65+k}], v[{64+4*p+k}:{65+4*p+k}]')
    for k in range(0,4,2): a(f'v_pk_add_f32 v[{92+k}:{93+k}], v[{92+k}:{93+k}], v[{96+k}:{97+k}]')
    for k in range(4): a(f'v_mov_b32 v{100+k}, v{92+k}')
    a('s_nop 1')
    for k in range(4): a(f'v_permlane32_swap_b32 v{100+k}, v{92+k}')
    for k in range(4): a(f'v_add_f32 v{92+k}, v{92+k}, v{100+k}')
    for k in range(4): a(f'v_mov_b32 v{100+k}, v{92+k}')
    a('s_nop 1')
    for k in range(4): a(f'v_permlane16_swap_b32 v{100+k}, v{92+k}')
    for k in range(4): a(f'v_add_f32 v{92+k}, v{92+k}, v{100+k}')
    a(f'''v_add_u32 v20, {CSL}, v20
    ds_write_b128 v20, v[64:67]
    v_cmp_gt_u32 vcc, 16, v0
    s_and_saveexec_b64 s[74:75], vcc
    ds_write_b128 v20, v[92:95] offset:1024
    s_mov_b64 exec, s[74:75]
    s_waitcnt lgkmcnt(0)
    s_barrier''')
    a.hop(False)
    a('s_branch L_tail_help')

def helpers(a):
    a.label('L_h67')
    a('s_waitcnt lgkmcnt(0)')
    srd(a, SRD_WS, sWS, 0xD00000 if STAMPS else WS_SIZE)
    k2_ids(a)
    a(f's_cmp_eq_u32 s{sW}, 6\ns_cbranch_scc0 L_h7')
    helper6(a); helper7(a)

W2R=112; J=16; sOHB=72
def w2_pos(pos):
    if pos<10: return 80,pos
    if pos<14: return 81,pos-10
    return 82,pos-14
def w2_load(a, pos):
    base,off=w2_pos(pos)
    a(f's_add_u32 s{T3}, s{base}, {off*2048}')
    for nb in range(2):
        d=W2R+8*pos+4*nb
        a(f'buffer_load_dwordx4 v[{d}:{d+3}], v15, {WSRD}, s{T3} offen offset:{1024*nb} sc1')
def w2_setup(a):
    a(f'''v_lshlrev_b32 v15, 4, v0
    s_mul_i32 s{T0}, s{sCB}, 144
    s_mul_i32 s{T1}, s{sW}, 10
    s_add_u32 s{T1}, s{T1}, 64
    s_add_u32 s{T1}, s{T1}, s{T0}
    s_lshl_b32 s{T1}, s{T1}, 11
    s_add_u32 s80, s{T1}, {WS_W2F}
    s_lshl_b32 s{T1}, s{sW}, 2
    s_add_u32 s{T1}, s{T1}, s{T0}
    s_lshl_b32 s{T1}, s{T1}, 11
    s_add_u32 s81, s{T1}, {WS_W2F}
    s_add_u32 s82, s81, {32*2048}''')
def read_tag(a):
    a(f'''v_mov_b32 v1, {LDS_MISC_END}
    ds_read_b32 v1, v1''')
def bc(i,n):
    lo=[str(i)]+['0']*(n-1); hi=[str(i)]+['1']*(n-1)
    return f'op_sel:[{",".join(lo)}] op_sel_hi:[{",".join(hi)}]'
def corr(a, d, cs, tt, npair):
    for p in range(npair):
        a(f'v_pk_fma_f32 v[{d+2*p}:{d+2*p+1}], v[2:3], v[{cs+2*p}:{cs+2*p+1}], v[{d+2*p}:{d+2*p+1}] {bc(tt,3)} neg_lo:[1,0,0] neg_hi:[1,0,0]')
def scale(a, d, pair, tt, npair):
    for p in range(npair):
        a(f'v_pk_mul_f32 v[{d+2*p}:{d+2*p+1}], v[{pair}:{pair+1}], v[{d+2*p}:{d+2*p+1}] {bc(tt,2)}')
def oh_base(a, P):
    a(f'''s_lshl_b32 s{T0}, s{sRB}, 2
    s_lshl_b32 s{T1}, s{sTM}, 1
    s_add_u32 s{T0}, s{T0}, s{T1}
    s_mul_i32 s{T0}, s{T0}, 144
    s_mul_i32 s{T1}, s{sIDX}, {4 if P else 10}
    s_mul_i32 s{T2}, s{sHN}, {2 if P else 5}
    s_add_u32 s{T0}, s{T0}, s{T1}
    s_add_u32 s{T0}, s{T0}, s{T2}
    s_add_u32 s{T0}, s{T0}, {32 if P else 64}
    s_lshl_b32 s{sOHB}, s{T0}, 10''')
def ffn_epi(a, tiles):
    CS0=200
    def csreads(j,buf):
        for aa in range(4):
            d=CS0+16*buf+4*aa
            a(f'ds_read_b128 v[{d}:{d+3}], v6 offset:{128*j+32*aa}')
    csreads(tiles[0][0],0)
    for n,(j,fl) in enumerate(tiles):
        buf=n&1
        if n+1<len(tiles): csreads(tiles[n+1][0],buf^1); a('s_waitcnt lgkmcnt(4)')
        else: a('s_waitcnt lgkmcnt(0)')
        cs=CS0+16*buf
        for tt in range(2):
            d=acc(j,tt)
            corr(a,d,cs,tt,8)
            for p in range(4): a(f'v_pk_mul_f32 v[{d+2*p}:{d+2*p+1}], v[{d+2*p}:{d+2*p+1}], v[{d+8+2*p}:{d+8+2*p+1}]')
            scale(a,d,4,tt,4)
            for r in range(4): a(f'v_cvt_pk_bf16_f32 v{d+8+r}, v{d+2*r}, v{d+2*r+1}')
            a(f's_add_u32 s{T3}, s{sOHB}, {(tt*144+fl)*1024}')
            a(f'buffer_store_dwordx4 v[{d+8}:{d+11}], v15, {WSRD}, s{T3} offen sc1')
def tok_stats(a):
    a(f'''v_and_b32 v7, 31, v0
    s_lshl_b32 s{T0}, s{sTM}, 6
    s_add_u32 s{T0}, s{T0}, 16
    v_add_u32 v7, s{T0}, v7
    v_lshlrev_b32 v7, 2, v7
    v_add_u32 v7, {STM}, v7
    ds_read_b32 v2, v7
    ds_read_b32 v3, v7 offset:128
    ds_read_b32 v4, v7 offset:{STR-STM}
    ds_read_b32 v5, v7 offset:{STR-STM+128}
    v_lshrrev_b32 v6, 5, v0
    v_lshlrev_b32 v6, 4, v6
    s_mul_i32 s{T0}, s{sHN}, 640
    s_add_u32 s{T0}, s{T0}, {CSL}
    v_add_u32 v6, s{T0}, v6
    v_lshlrev_b32 v15, 4, v0''')

def attn_job(a):
    Qf=J; Ko=J+8; Kp=J+16; Vo=J+24; Vp=J+32; So=J+36; Sp=J+52; O=J+68; X=J+84
    sHH,sTL=76,77
    a(f'''s_lshr_b32 s{sHH}, s{sW}, 2
    s_and_b32 s{sTL}, s{sW}, 3
    s_lshl_b32 s{T0}, s{sHH}, 2
    s_add_u32 s{T0}, s{T0}, s{sTL}
    s_lshl_b32 s{T0}, s{T0}, 11
    s_mul_i32 s{T1}, s{sHH}, 5
    s_add_u32 s{T1}, s{T1}, s{sTL}
    s_lshl_b32 s{T1}, s{T1}, 11
    v_lshlrev_b32 v1, 4, v0
    v_add_u32 v2, s{T0}, v1
    v_add_u32 v3, s{T1}, v1
    ds_read_b128 v[{Qf}:{Qf+3}], v2 offset:{EXQ}
    ds_read_b128 v[{Ko}:{Ko+3}], v3 offset:{EXK+2048}
    ds_read_b128 v[{Kp}:{Kp+3}], v3 offset:{EXK}
    ds_read_b128 v[{Qf+4}:{Qf+7}], v2 offset:{EXQ+1024}
    ds_read_b128 v[{Ko+4}:{Ko+7}], v3 offset:{EXK+2048+1024}
    ds_read_b128 v[{Kp+4}:{Kp+7}], v3 offset:{EXK+1024}
    ds_read_b128 v[{Vo}:{Vo+3}], v3 offset:{EXV+2048}
    ds_read_b128 v[{Vo+4}:{Vo+7}], v3 offset:{EXV+2048+1024}
    ds_read_b128 v[{Vp}:{Vp+3}], v3 offset:{EXV+1024}
    v_and_b32 v4, 31, v0
    v_lshrrev_b32 v5, 5, v0
    v_lshlrev_b32 v5, 2, v5
    v_sub_u32 v4, v4, v5
    v_add_u32 v4, 18, v4
    v_mov_b32 v6, 0x5555
    v_mov_b32 v7, 0
    v_lshlrev_b64 v[8:9], v4, v[6:7]
    s_or_b32 s{T2}, s{sRB}, s{sTL}
    s_cmp_eq_u32 s{T2}, 0
    s_cselect_b32 s{T2}, 0, -1
    v_and_b32 v8, s{T2}, v8
    v_mov_b32 v10, 0xff800000
    s_mov_b32 s78, {fh(28**-0.5*1.4426950408889634)}
    s_mov_b32 s79, {fh(28**-0.5*1.4426950408889634)}
    s_waitcnt lgkmcnt(6)
    v_mfma_f32_32x32x16_bf16 v[{So}:{So+15}], v[{Ko}:{Ko+3}], v[{Qf}:{Qf+3}], 0
    v_mfma_f32_32x32x16_bf16 v[{Sp}:{Sp+15}], v[{Kp}:{Kp+3}], v[{Qf}:{Qf+3}], 0
    s_waitcnt lgkmcnt(3)
    v_mfma_f32_32x32x16_bf16 v[{So}:{So+15}], v[{Ko+4}:{Ko+7}], v[{Qf+4}:{Qf+7}], v[{So}:{So+15}]
    v_mfma_f32_32x32x16_bf16 v[{Sp}:{Sp+15}], v[{Kp+4}:{Kp+7}], v[{Qf+4}:{Qf+7}], v[{Sp}:{Sp+15}]''')
    regs=[(So+r, 9, 8*(r>>2)+(r&3)) for r in range(16)]+[(Sp+r, 8, 8*(r>>2)+(r&3)) for r in range(8,16)]
    mk=[O+n for n in range(16)]+[X+4+n for n in range(8)]
    for n,(r,V,k) in enumerate(regs): a(f'v_bfe_i32 v{mk[n]}, v{V}, {k}, 1')
    for n,(r,V,k) in enumerate(regs): a(f'v_bfi_b32 v{r}, v{mk[n]}, v{r}, v10')
    rr=[r for r,_,_ in regs]
    a(f'v_max3_f32 v{X}, v{rr[0]}, v{rr[1]}, v{rr[2]}')
    a(f'v_max3_f32 v{X+1}, v{rr[3]}, v{rr[4]}, v{rr[5]}')
    for n in range(6,22,4):
        a(f'v_max3_f32 v{X}, v{X}, v{rr[n]}, v{rr[n+1]}')
        a(f'v_max3_f32 v{X+1}, v{X+1}, v{rr[n+2]}, v{rr[n+3]}')
    a(f'''v_max3_f32 v{X}, v{X}, v{rr[22]}, v{rr[23]}
    v_max_f32 v{X}, v{X}, v{X+1}
    v_mov_b32 v{X+1}, v{X}
    s_nop 1
    v_permlane32_swap_b32 v{X+1}, v{X}
    s_nop 0
    v_max_f32 v{X}, v{X}, v{X+1}
    v_mul_f32 v{X}, s78, v{X}''')
    pairs=[So+2*n for n in range(8)]+[Sp+8+2*n for n in range(4)]
    for r in pairs: a(f'v_pk_fma_f32 v[{r}:{r+1}], v[{r}:{r+1}], s[78:79], v[{X}:{X+1}] op_sel_hi:[1,1,0] neg_lo:[0,0,1] neg_hi:[0,0,1]')
    for r in rr: a(f'v_exp_f32 v{r}, v{r}')
    a(f'v_pk_add_f32 v[{X}:{X+1}], v[{pairs[0]}:{pairs[0]+1}], v[{pairs[1]}:{pairs[1]+1}]')
    a(f'v_pk_add_f32 v[{X+2}:{X+3}], v[{pairs[2]}:{pairs[2]+1}], v[{pairs[3]}:{pairs[3]+1}]')
    for n in range(4,12,2):
        a(f'v_pk_add_f32 v[{X}:{X+1}], v[{X}:{X+1}], v[{pairs[n]}:{pairs[n]+1}]')
        a(f'v_pk_add_f32 v[{X+2}:{X+3}], v[{X+2}:{X+3}], v[{pairs[n+1]}:{pairs[n+1]+1}]')
    for n in range(8): a(f'v_cvt_pk_bf16_f32 v{Ko+n}, v{So+2*n}, v{So+2*n+1}')
    for n in range(4): a(f'v_cvt_pk_bf16_f32 v{Kp+n}, v{Sp+8+2*n}, v{Sp+8+2*n+1}')
    a(f'''v_pk_add_f32 v[{X}:{X+1}], v[{X}:{X+1}], v[{X+2}:{X+3}]
    s_waitcnt lgkmcnt(0)
    v_mfma_f32_32x32x16_bf16 v[{O}:{O+15}], v[{Vo}:{Vo+3}], v[{Ko}:{Ko+3}], 0
    v_add_f32 v{X}, v{X}, v{X+1}
    v_mfma_f32_32x32x16_bf16 v[{O}:{O+15}], v[{Vo+4}:{Vo+7}], v[{Ko+4}:{Ko+7}], v[{O}:{O+15}]
    v_mov_b32 v{X+1}, v{X}
    v_mfma_f32_32x32x16_bf16 v[{O}:{O+15}], v[{Vp}:{Vp+3}], v[{Kp}:{Kp+3}], v[{O}:{O+15}]
    s_lshl_b32 s{T0}, s{sRB}, 2
    v_permlane32_swap_b32 v{X+1}, v{X}
    s_add_u32 s{T0}, s{T0}, s{sTL}
    s_mul_i32 s{T0}, s{T0}, 144
    v_add_f32 v{X}, v{X}, v{X+1}
    s_lshl_b32 s{T1}, s{sIDX}, 2
    s_lshl_b32 s{T2}, s{sHH}, 1
    v_rcp_f32 v{X}, v{X}
    s_add_u32 s{T0}, s{T0}, s{T1}
    s_add_u32 s{T0}, s{T0}, s{T2}
    s_lshl_b32 s{T0}, s{T0}, 10
    v_cmp_gt_u32 vcc, 32, v0''')
    for p in range(8): a(f'v_pk_mul_f32 v[{O+2*p}:{O+2*p+1}], v[{X}:{X+1}], v[{O+2*p}:{O+2*p+1}] op_sel_hi:[0,1]')
    for n in range(8): a(f'v_cvt_pk_bf16_f32 v{So+n}, v{O+2*n}, v{O+2*n+1}')
    for n in (6,7): a(f'v_cndmask_b32 v{So+n}, 0, v{So+n}, vcc')
    a(f'''buffer_store_dwordx4 v[{So}:{So+3}], v1, {WSRD}, s{T0} offen sc1
    buffer_store_dwordx4 v[{So+4}:{So+7}], v1, {WSRD}, s{T0} offen offset:1024 sc1''')

def cmp_tail_P(a):
    a.hop(True)
    read_tag(a)
    tok_stats(a)
    a(f'''v_lshrrev_b32 v7, 5, v0
    v_lshlrev_b32 v7, 4, v7
    s_lshl_b32 s{T0}, s{sTM}, 8
    s_add_u32 s{T0}, s{T0}, {64+STM}
    v_add_u32 v7, s{T0}, v7
    v_and_b32 v8, 31, v0
    v_lshlrev_b32 v8, 2, v8
    s_mul_i32 s{T0}, s{sHN}, 640
    s_add_u32 s{T0}, s{T0}, {CSL+256}
    v_add_u32 v8, s{T0}, v8
    ds_read_b32 v8, v8''')
    for j in range(2):
        for aa in range(4):
            d=200+16*j+4*aa
            a(f'ds_read_b128 v[{d}:{d+3}], v6 offset:{128*j+32*aa}')
    a(f'''s_lshl_b32 s{T0}, s{sHN}, 2
    s_lshl_b32 s{T1}, s{sTM}, 1
    s_add_u32 s{T0}, s{T0}, s{T1}
    s_lshl_b32 s{T0}, s{T0}, 11
    v_add_u32 v10, s{T0}, v15
    s_mul_i32 s{T0}, s{sHN}, 5
    s_add_u32 s{T0}, s{T0}, s{T1}
    s_add_u32 s{T0}, s{T0}, 1
    s_lshl_b32 s{T0}, s{T0}, 11
    v_add_u32 v11, s{T0}, v15
    v_cmp_gt_u32 vcc, 32, v0
    s_waitcnt lgkmcnt(4)
    v_readfirstlane_b32 s{sTAG}, v1''')
    for j in range(2):
        if j==1:
            a('s_waitcnt lgkmcnt(12)')
        for tt in range(2):
            d=acc(j,tt); cs=200+16*j
            corr(a,d,cs,tt,8); scale(a,d,4,tt,8)
            for n in range(8): a(f'v_cvt_pk_bf16_f32 v{d+n}, v{d+2*n}, v{d+2*n+1}')
            if j==0:
                for n in (6,7): a(f'v_cndmask_b32 v{d+n}, 0, v{d+n}, vcc')
                a(f'ds_write_b128 v10, v[{d}:{d+3}] offset:{EXQ+2048*tt}')
                a(f'ds_write_b128 v10, v[{d+4}:{d+7}] offset:{EXQ+2048*tt+1024}')
            else:
                a(f'ds_write_b128 v11, v[{d}:{d+3}] offset:{EXK+2048*tt}')
                a(f'ds_write_b128 v11, v[{d+4}:{d+7}] offset:{EXK+2048*tt+1024}')
        if j==0:
            for aa in range(4):
                a(f'ds_read_b128 v[{200+4*aa}:{203+4*aa}], v7 offset:{32*aa}')
                a(f'ds_read_b128 v[{232+4*aa}:{235+4*aa}], v7 offset:{STR-STM+32*aa}')
    a('s_waitcnt lgkmcnt(4)')
    for tt in range(2):
        d=acc(2,tt)
        mreg = 200 if tt==0 else 216
        rreg = 232 if tt==0 else 40
        for p in range(8):
            a(f'v_pk_fma_f32 v[{d+2*p}:{d+2*p+1}], v[{mreg+2*p}:{mreg+2*p+1}], v[8:9], v[{d+2*p}:{d+2*p+1}] op_sel_hi:[1,0,1] neg_lo:[1,0,0] neg_hi:[1,0,0]')
        if tt==0:
            for aa in range(4):
                a(f'ds_read_b128 v[{216+4*aa}:{219+4*aa}], v7 offset:{128+32*aa}')
                a(f'ds_read_b128 v[{40+4*aa}:{43+4*aa}], v7 offset:{STR-STM+128+32*aa}')
        for p in range(8):
            a(f'v_pk_mul_f32 v[{d+2*p}:{d+2*p+1}], v[{rreg+2*p}:{rreg+2*p+1}], v[{d+2*p}:{d+2*p+1}]')
        for n in range(8): a(f'v_cvt_pk_bf16_f32 v{d+n}, v{d+2*n}, v{d+2*n+1}')
        a(f'ds_write_b128 v11, v[{d}:{d+3}] offset:{EXV+2048*tt}')
        a(f'ds_write_b128 v11, v[{d+4}:{d+7}] offset:{EXV+2048*tt+1024}')
        if tt==0: a('s_waitcnt lgkmcnt(2)')
    a(f'''v_and_b32 v1, 15, v0
    v_lshlrev_b32 v7, 2, v1
    v_add_u32 v7, {STM}, v7
    ds_read_b32 v12, v7
    ds_read_b32 v13, v7 offset:{STR-STM}
    v_lshrrev_b32 v8, 4, v0
    s_mul_i32 s{T0}, s{sHN}, 5
    s_add_u32 s{T0}, s{T0}, s{sTM}
    s_add_u32 s{T0}, s{T0}, 1
    s_lshl_b32 s{T0}, s{T0}, 7
    s_add_u32 s{T0}, s{T0}, {CSL}
    v_lshlrev_b32 v9, 4, v8
    v_add_u32 v9, s{T0}, v9
    ds_read_b128 v[200:203], v9
    ds_read_b128 v[204:207], v9 offset:64
    s_mul_i32 s{T0}, s{sHN}, {5*2048}
    s_waitcnt lgkmcnt(0)''')
    for p in range(4):
        a(f'v_pk_fma_f32 v[{HACC+2*p}:{HACC+2*p+1}], v[12:13], v[{200+2*p}:{201+2*p}], v[{HACC+2*p}:{HACC+2*p+1}] op_sel_hi:[0,1,1] neg_lo:[1,0,0] neg_hi:[1,0,0]')
    for p in range(4):
        a(f'v_pk_mul_f32 v[{HACC+2*p}:{HACC+2*p+1}], v[12:13], v[{HACC+2*p}:{HACC+2*p+1}] op_sel:[1,0] op_sel_hi:[1,1]')
    a(f'''s_cmp_eq_u32 s{sTM}, 0
    s_cbranch_scc0 L_haloV
    v_and_b32 v9, 1, v8
    v_lshlrev_b32 v9, 5, v9
    v_add3_u32 v9, v9, v1, 16
    v_lshlrev_b32 v9, 4, v9
    v_lshrrev_b32 v10, 1, v8
    v_lshlrev_b32 v10, 3, v10
    v_add3_u32 v9, v9, v10, s{T0}''')
    for n in range(4): a(f'v_cvt_pk_bf16_f32 v{200+n}, v{HACC+2*n}, v{HACC+2*n+1}')
    a(f'''ds_write_b64 v9, v[200:201] offset:{EXK}
    ds_write_b64 v9, v[202:203] offset:{EXK+1024}
    s_branch L_haloD
    L_haloV:
    v_bfe_u32 v9, v1, 2, 1
    v_lshlrev_b32 v9, 9, v9
    v_lshrrev_b32 v10, 3, v1
    v_lshlrev_b32 v10, 3, v10
    v_and_b32 v11, 3, v1
    v_lshlrev_b32 v11, 1, v11
    v_add3_u32 v9, v9, v10, v11
    v_lshlrev_b32 v10, 6, v8
    v_add3_u32 v9, v9, v10, s{T0}''')
    for r in range(8): a(f'v_cvt_pk_bf16_f32 v{200+r}, v{HACC+r}, v{HACC+r}')
    for dt in range(2):
        for r in range(4):
            a(f'ds_write_b16 v9, v{200+4*dt+r} offset:{EXV+1024+(16*dt+r)*16}')
    a('''L_haloD:
    s_waitcnt lgkmcnt(0)
    s_barrier''')
    stamp(a,3,'tail')
    a.label('L_jobH')
    attn_job(a)
    stamp(a,4,'tail')
    a(f's_cmp_ge_u32 s{sW}, 4\ns_cbranch_scc1 L_help_pub')
    tok_stats(a)
    oh_base(a, True)
    a('s_waitcnt lgkmcnt(0)')
    a('v_pk_mul_f32 v[4:5], v[4:5], v[4:5]')
    ffn_epi(a,[(3,0),(4,1)])
    a.hop(False)
    a('s_branch L_cmp_pub')

def cmp_tail_Q(a):
    a.hop(True)
    read_tag(a)
    tok_stats(a)
    oh_base(a, False)
    a(f's_waitcnt lgkmcnt(0)\nv_readfirstlane_b32 s{sTAG}, v1')
    a('v_pk_mul_f32 v[4:5], v[4:5], v[4:5]')
    ffn_epi(a,[(j,j) for j in range(5)])
    a.hop(False)

def pub_and_k2(a, stop):
    a.label('L_cmp_pub')
    a.hop(True)
    stamp(a,3)
    a('s_waitcnt vmcnt(0)\ns_barrier')
    a(f's_cmp_eq_u32 s{sW}, 0\ns_cbranch_scc0 L_pubd')
    flag_store(a, WS_F2, 0)
    a.label('L_pubd')
    stamp(a,4)
    a(f's_cmp_lt_u32 s{sJ2}, 28\ns_cbranch_scc0 L_fin')
    if stop=='k1': a('s_branch L_fin')
    w2_setup(a)
    for pos in range(18): w2_load(a,pos)
    a('s_branch L_k2')
    a.label('L_tail_help')
    a('s_barrier')
    stamp(a,2)
    read_tag(a)
    a(f's_waitcnt lgkmcnt(0)\nv_readfirstlane_b32 s{sTAG}, v1')
    a(f's_cmp_lt_u32 s{sJ2}, 28\ns_cbranch_scc0 L_th')
    w2_setup(a)
    for pos in range(18): w2_load(a,pos)
    a.label('L_th')
    a(f's_bitcmp1_b32 s{sC}, 0\ns_cbranch_scc1 L_thq')
    a('s_barrier\ns_branch L_jobH')
    a.label('L_help_pub')
    a('s_waitcnt vmcnt(0)')
    a.label('L_thq')
    a('s_barrier')
    a(f's_cmp_lt_u32 s{sJ2}, 28\ns_cbranch_scc0 L_fin')
    if stop=='k1': a('s_branch L_fin')
    k2(a)

KACC=16; ARING=80
class VQ:
    def __init__(s): s.q=[]
    def issue(s,tag): s.q.append(tag)
    def wait(s,a,tag):
        i=s.q.index(tag); n=len(s.q)-1-i
        a(f's_waitcnt vmcnt({n})'); s.q=s.q[i+1:]
def k2(a):
    a.label('L_k2')
    a('v_lshlrev_b32 v15, 4, v0')
    srd(a, SRD_A, sX, SZ_X); srd(a, SRD_B, sOUT, SZ_X)
    a(f'''v_lshrrev_b32 v1, 4, v0
    s_lshl_b32 s{T0}, s{sTT}, 6
    s_lshl_b32 s{T1}, s{sW}, 2
    s_add_u32 s{T0}, s{T0}, s{T1}
    v_add_u32 v1, s{T0}, v1
    v_mul_u32_u24 v1, 896, v1
    v_and_b32 v2, 15, v0
    v_lshlrev_b32 v2, 3, v2
    s_lshl_b32 s{T0}, s{sCB}, 7
    v_add3_u32 v14, v1, v2, s{T0}
    buffer_load_dwordx2 v[10:11], v14, s[{SRD_A}:{SRD_A+3}], 0 offen
    s_mov_b32 s83, {32*896}
    buffer_load_dwordx2 v[12:13], v14, s[{SRD_A}:{SRD_A+3}], s83 offen
    s_lshl_b32 s{T0}, s{sTT}, 1
    s_mul_i32 s{T0}, s{T0}, 144
    s_mul_i32 s{T1}, s{sW}, 10
    s_add_u32 s{T1}, s{T1}, 64
    s_add_u32 s{T1}, s{T1}, s{T0}
    s_lshl_b32 s84, s{T1}, 10
    s_lshl_b32 s{T1}, s{sW}, 2
    s_add_u32 s{T1}, s{T1}, s{T0}
    s_lshl_b32 s85, s{T1}, 10
    s_add_u32 s86, s85, {32*1024}
    s_lshr_b32 s{T0}, s{sTT}, 1
    s_lshl_b32 s{T0}, s{T0}, 4
    s_lshl_b32 s{T1}, s{sW}, 1
    s_add_u32 s{T0}, s{T0}, s{T1}
    s_lshl_b32 s{T0}, s{T0}, 7
    s_add_u32 s87, s{T0}, {WS_F2}
    v_mov_b32 v3, s87
    v_and_b32 v1, 31, v0
    v_mul_u32_u24 v1, {RED_P}, v1
    v_lshrrev_b32 v2, 5, v0
    v_lshlrev_b32 v2, 4, v2
    s_mul_i32 s{T0}, s{sW}, {32*RED_P}
    v_add3_u32 v8, v1, v2, s{T0}
    v_add_u32 v9, {RED_T}, v8''')
    def poll(off, name):
        a(f's_mov_b32 s{T0}, 0')
        a.label(name)
        a(f'''buffer_load_dword v4, v3, {WSRD}, 0 offen offset:{off} sc1
        s_waitcnt vmcnt(0)
        v_readfirstlane_b32 s{T1}, v4
        s_add_u32 s{T0}, s{T0}, 1
        s_cmp_eq_u32 s{T1}, s{sTAG}
        s_cbranch_scc1 {name}_d
        s_sleep 1
        s_cmp_lt_u32 s{T0}, 0x8000
        s_cbranch_scc1 {name}
        {name}_d:''')
    items=[]
    for tt in range(2):
        for p in range(10): items.append((tt,p,84,p))
    for tt in range(2):
        for p in range(8): items.append((tt,10+p,85 if p<4 else 86,p if p<4 else p-4))
    vq=VQ()
    def load(n):
        tt,pos,sb,off=items[n]; d=ARING+4*(n%8)
        a(f's_add_u32 s{T3}, s{sb}, {(tt*144+off)*1024}')
        a(f'buffer_load_dwordx4 v[{d}:{d+3}], v15, {WSRD}, s{T3} offen sc1'); vq.issue(n)
    def compute(n):
        tt,pos,sb,off=items[n]; d=ARING+4*(n%8)
        for nb in range(2):
            c=KACC+32*tt+16*nb; w=W2R+8*pos+4*nb
            cin = '0' if n in (0,10) else f'v[{c}:{c+15}]'
            a(f'v_mfma_f32_32x32x16_bf16 v[{c}:{c+15}], v[{w}:{w+3}], v[{d}:{d+3}], {cin}')
    poll(128,'L_pq')
    stamp(a,5)
    for n in range(8): load(n)
    wr=[(0,nb,aa) for nb in range(2) for aa in range(4)]
    for n in range(36):
        vq.wait(a,n)
        compute(n)
        if n==4:
            a(f'buffer_load_dword v5, v3, {WSRD}, 0 offen sc1'); vq.issue('pf')
        if n==12:
            assert 'pf' not in vq.q
            a(f'''v_readfirstlane_b32 s{T1}, v5
            s_nop 0
            s_cmp_eq_u32 s{T1}, s{sTAG}
            s_cbranch_scc1 L_pp_d''')
            poll(0,'L_pp')
        if n+8<36: load(n+8)
        if n>=29 and wr:
            for _ in range(2 if n<33 else 0):
                if wr:
                    tt,nb,aa=wr.pop(0); c=KACC+32*tt+16*nb+4*aa
                    a(f'ds_write_b128 v8, v[{c}:{c+3}] offset:{128*nb+32*aa}')
    stamp(a,5,'tail')
    a('s_nop 7')
    for nb in range(2):
        for aa in range(4):
            c=KACC+32+16*nb+4*aa
            a(f'ds_write_b128 v9, v[{c}:{c+3}] offset:{128*nb+32*aa}')
    a(f'''v_lshrrev_b32 v1, 4, v0
    s_lshl_b32 s{T0}, s{sW}, 2
    v_add_u32 v1, s{T0}, v1
    v_mul_u32_u24 v1, {RED_P}, v1
    v_and_b32 v2, 15, v0
    v_lshlrev_b32 v2, 4, v2
    v_add_u32 v1, v1, v2
    v_add_u32 v2, {RED_T}, v1
    s_waitcnt lgkmcnt(0)
    s_barrier''')
    for tt in range(2):
        for p in range(8):
            d=16+32*tt+4*p
            a(f'ds_read_b128 v[{d}:{d+3}], v{1+tt} offset:{p*32*RED_P}')
    for tt in range(2):
        a(f's_waitcnt lgkmcnt({8 if tt==0 else 0})')
        d=16+32*tt
        for (x,y) in ((0,4),(1,5),(2,6),(3,7),(0,2),(1,3),(0,1)):
            for k in (0,2): a(f'v_pk_add_f32 v[{d+4*x+k}:{d+4*x+k+1}], v[{d+4*x+k}:{d+4*x+k+1}], v[{d+4*y+k}:{d+4*y+k+1}]')
        x=10+2*tt
        a(f'''v_lshlrev_b32 v4, 16, v{x}
        v_and_b32 v5, 0xffff0000, v{x}
        v_lshlrev_b32 v6, 16, v{x+1}
        v_and_b32 v7, 0xffff0000, v{x+1}
        v_pk_add_f32 v[{d}:{d+1}], v[{d}:{d+1}], v[4:5]
        v_pk_add_f32 v[{d+2}:{d+3}], v[{d+2}:{d+3}], v[6:7]
        v_cvt_pk_bf16_f32 v{d+4}, v{d}, v{d+1}
        v_cvt_pk_bf16_f32 v{d+5}, v{d+2}, v{d+3}''')
        a(f'buffer_store_dwordx2 v[{d+4}:{d+5}], v14, s[{SRD_B}:{SRD_B+3}], {"0" if tt==0 else "s83"} offen')
    a.hop(False)
    a.label('L_fin')
    if STAMPS:
        a('s_memrealtime s[100:101]')
        a(f'''s_waitcnt lgkmcnt(0)
        s_lshl_b32 s{T0}, s2, 3
        s_add_u32 s{T0}, s{T0}, s{sW}
        s_lshl_b32 s{T0}, s{T0}, 6
        s_add_u32 s{T0}, s{T0}, 0xC00000
        v_mov_b32 v1, s{T0}''')
        for i in range(7): a(f'v_mov_b32 v{2+i}, s{88+2*i}')
        a(f'''v_mov_b32 v9, 0
        v_cmp_eq_u32 vcc, 0, v0
        s_and_saveexec_b64 s[74:75], vcc
        buffer_store_dwordx4 v[2:5], v1, {WSRD}, 0 offen
        buffer_store_dwordx4 v[6:9], v1, {WSRD}, 0 offen offset:16
        s_mov_b64 exec, s[74:75]''')
    a(f'''s_cmp_eq_u32 s{sW}, 6
    s_cbranch_scc0 L_end
    s_cmp_eq_u32 s{sJ2}, 31
    s_cbranch_scc0 L_end
    s_cmp_eq_u32 s{sXCD}, 0
    s_cbranch_scc0 L_end
    v_lshlrev_b32 v1, 7, v0
    v_add_u32 v1, {WS_F1}, v1
    s_mov_b32 s{T0}, 0
    L_pe:
    s_mov_b32 s{T1}, 8192
    s_mov_b32 s{T2}, 16384
    s_mov_b32 s{T3}, 24576
    buffer_load_dword v4, v1, {WSRD}, 0 offen sc1
    buffer_load_dword v5, v1, {WSRD}, s{T1} offen sc1
    buffer_load_dword v6, v1, {WSRD}, s{T2} offen sc1
    buffer_load_dword v7, v1, {WSRD}, s{T3} offen sc1
    s_waitcnt vmcnt(0)
    v_xor_b32 v4, s{sTAG}, v4
    v_xor_b32 v5, s{sTAG}, v5
    v_xor_b32 v6, s{sTAG}, v6
    v_xor_b32 v7, s{sTAG}, v7
    v_or_b32 v4, v4, v5
    v_or3_b32 v4, v4, v6, v7
    v_cmp_eq_u32 vcc, 0, v4
    s_add_u32 s{T0}, s{T0}, 1
    s_cmp_eq_u64 vcc, exec
    s_cbranch_scc1 L_ped
    s_sleep 8
    s_cmp_lt_u32 s{T0}, 0x8000
    s_cbranch_scc1 L_pe
    L_ped:
    v_mov_b32 v1, {WS_EP}
    v_mov_b32 v2, s{sTAG}
    v_cmp_eq_u32 vcc, 0, v0
    s_and_saveexec_b64 s[74:75], vcc
    buffer_store_dword v2, v1, {WSRD}, 0 offen sc1''')
    a.label('L_end')
    a('s_endpgm')

def wrap(body):
    hdr=open('cdna_kernels/'+KNAME[:-7]+'.s.ref').read().split('\n')
    head=[]
    for l in hdr:
        if l.startswith('; @launch') or l.startswith('; Override') or l.startswith('; grid='): continue
        if l.startswith('.amdgcn_target'): break
        head.append(l)
    out=head+[f'; @launch grid=(256,1,1) block=(512,1,1) lds={LDS_BYTES}',
      '.amdgcn_target "amdgcn-amd-amdhsa--gfx950"','.text',f'.globl {KNAME}','.p2align 8',f'.type {KNAME},@function',f'{KNAME}:']
    out+=body
    out+=['.section .rodata,"a"','.p2align 6',f'.amdhsa_kernel {KNAME}',
      '  .amdhsa_next_free_vgpr 256','  .amdhsa_next_free_sgpr 102','  .amdhsa_accum_offset 256',
      '  .amdhsa_group_segment_fixed_size 0','  .amdhsa_kernarg_size 80','  .amdhsa_user_sgpr_count 2',
      '  .amdhsa_user_sgpr_kernarg_segment_ptr 1','  .amdhsa_system_sgpr_workgroup_id_x 1','.end_amdhsa_kernel','']
    return '\n'.join(out)
def sizes(body):
    open('_sz.s','w').write(re.sub(r'HOPSTART\d+','L_hopret',wrap(body)))
    subprocess.run(['clang','-x','assembler','-target','amdgcn-amd-amdhsa','-mcpu=gfx950','-c','_sz.s','-o','_sz.o'],check=True)
    d=subprocess.run(['llvm-objdump','-d','--mcpu=gfx950','_sz.o'],capture_output=True,text=True).stdout
    addrs=[int(m.group(1),16) for m in re.finditer(r'// ([0-9A-Fa-f]{12}):',d)]
    return addrs
def insert_hops(body, step=240, nsl=16):
    addrs=sizes(body)
    out=[]; k=0; on=False; last=None; hops=[]
    for l in body:
        t=l.strip()
        if t==';HOPON': on=True; last=None; continue
        if t==';HOPOFF': on=False; continue
        isins = t and not t.endswith(':') and not t.startswith(('.',';'))
        if isins:
            ad=addrs[k]; k+=1
            if on and (last is None or ad-last>=step):
                hops.append(len(out)); out.append(None); last=ad
        out.append(l)
    n=len(hops)
    for i,pos in enumerate(hops):
        nxt = f'HOP{i+nsl}' if i+nsl<n else 'L_hopret'
        lab = f'HOP{i}:'
        pre = f'HOPSTART{i}:\n' if i<nsl else ''
        out[pos]=f'{pre}{lab}\n  s_cbranch_execz {nxt}'
    res=[]
    for l in out: res+=l.split('\n')
    return res,n
def build(stop=None):
    a=Asm()
    entry(a)
    dma_wave(a,'P'); dma_wave(a,'Q')
    cmp_entry(a)
    cmp_wave(a,'P'); cmp_tail_P(a)
    helpers(a)
    cmp_wave(a,'Q'); cmp_tail_Q(a)
    pub_and_k2(a, stop)
    body, viol = hazard.process(a.L, insert=True, verbose=False)
    nh=0
    if HOPS: body,nh=insert_hops(body)
    else: body=[l for l in body if not l.strip().startswith(';HOP')]
    return wrap(body), viol, nh
if __name__=='__main__':
    stop = sys.argv[2] if len(sys.argv)>2 else None
    if '-s' in sys.argv: STAMPS=True
    if '-sdma' in sys.argv: STAMPS=True; STAMPSET='dma'
    if '-stail' in sys.argv: STAMPS=True; STAMPSET='tail'
    if '-nohop' in sys.argv: HOPS=False
    txt,viol,nh=build(stop)
    path=sys.argv[1] if len(sys.argv)>1 else 'cdna_kernels/'+KNAME[:-7]+'.s'
    open(path,'w').write(txt)
    print('written',path,len(txt),'bytes; hazard nops inserted:',len(viol),'hops',nh)
    if '-v' in sys.argv:
        for v in viol: print(f'  +{v[1]} before [{v[3]}] after [{v[2]}]')
```
